```python
import torch

def _softmax(x, axis=-1):
    return torch.softmax(x, dim=axis)
def _gelu(x):
    return torch.nn.functional.gelu(x, approximate="tanh")
def _silu(x):
    return torch.nn.functional.silu(x)
def _sigmoid(x):
    return torch.sigmoid(x)
def _layernorm(x, axis=-1, eps=1e-5):
    m = x.mean(dim=axis, keepdim=True)
    v = x.var(dim=axis, keepdim=True, unbiased=False)
    return (x - m) / torch.sqrt(v + eps)
def _scatter_add(tgt, idx, src, axis=0):
    return tgt.clone().index_add_(axis, idx, src)
def _segment_sum(src, seg, n):
    out = torch.zeros((n,) + src.shape[1:], dtype=src.dtype)
    return out.index_add_(0, seg, src)
def _pad(x, pw):
    flat = tuple(v for pair in reversed(pw) for v in pair)
    return torch.nn.functional.pad(x, flat)

kernel_name = 'concat_heads__gqa_block_cached__gqa_block_cached__near_ridge'

def setup_inputs():

    _w = (lambda a: (lambda t: t.to(torch.bfloat16) if t.is_floating_point() else t)(torch.as_tensor(a)))
    def _A_setup():
        B, Sq, D = 16, 144, 512
        Hq, Hkv, Sk, Dh = 32, 32, 512, 128
        assert Hq % Hkv == 0, (Hq, Hkv)
        return {
            "x": _w((lambda *s: torch.randn(*s, dtype=torch.bfloat16) * 0.8)(B, Sq, D)),
            "k_cache": _w((lambda *s: torch.randn(*s, dtype=torch.bfloat16) * 0.8)(B, Hkv, Sk, Dh)),
            "v_cache": _w((lambda *s: torch.randn(*s, dtype=torch.bfloat16) * 0.05)(B, Hkv, Sk, Dh)),
            "wq": _w((lambda *s: torch.randn(*s, dtype=torch.bfloat16) * 0.8)(D, Hq * Dh) * (D ** -0.5)),
            "wo": _w((lambda *s: torch.randn(*s, dtype=torch.bfloat16) * 0.05)(Hq * Dh, D) * ((Hq * Dh) ** -0.5)),
        }
    _A_in = _A_setup()

    def _B_setup():
        B, Sq, D = 16, 144, 512
        Hq, Hkv, Sk, Dh = 32, 32, 512, 128
        assert Hq % Hkv == 0, (Hq, Hkv)
        return {
            "x": _w((lambda *s: torch.randn(*s, dtype=torch.bfloat16) * 0.8)(B, Sq, D)),
            "k_cache": _w((lambda *s: torch.randn(*s, dtype=torch.bfloat16) * 0.8)(B, Hkv, Sk, Dh)),
            "v_cache": _w((lambda *s: torch.randn(*s, dtype=torch.bfloat16) * 0.05)(B, Hkv, Sk, Dh)),
            "wq": _w((lambda *s: torch.randn(*s, dtype=torch.bfloat16) * 0.8)(D, Hq * Dh) * (D ** -0.5)),
            "wo": _w((lambda *s: torch.randn(*s, dtype=torch.bfloat16) * 0.05)(Hq * Dh, D) * ((Hq * Dh) ** -0.5)),
        }
    _B_in = _B_setup()

    return {
        "A_x": _A_in["x"],
        "A_k_cache": _A_in["k_cache"],
        "A_v_cache": _A_in["v_cache"],
        "A_wq": _A_in["wq"],
        "A_wo": _A_in["wo"],
        "B_x": _B_in["x"],
        "B_k_cache": _B_in["k_cache"],
        "B_v_cache": _B_in["v_cache"],
        "B_wq": _B_in["wq"],
        "B_wo": _B_in["wo"],
    }

def reference(A_x, A_k_cache, A_v_cache, A_wq, A_wo, B_x, B_k_cache, B_v_cache, B_wq, B_wo):
    def _A_ref(x, k_cache, v_cache, wq, wo):
        B, Sq, D = x.shape
        Hq, Dh = 32, 128
        Hkv = k_cache.shape[1]
        rep = Hq // Hkv
        q = (lambda x, *d: x.permute(*d))((x @ wq).reshape(B, Sq, Hq, Dh), 0, 2, 1, 3)
        k = (lambda x, n, axis: torch.repeat_interleave(x, n, dim=axis))(k_cache, rep, axis=1)
        v = (lambda x, n, axis: torch.repeat_interleave(x, n, dim=axis))(v_cache, rep, axis=1)
        scores = torch.einsum("bhqd,bhkd->bhqk", q, k) * (Dh ** -0.5)
        p = _softmax(scores, axis=-1)
        o = torch.einsum("bhqk,bhkd->bhqd", p, v)
        return (lambda x, *d: x.permute(*d))(o, 0, 2, 1, 3).reshape(B, Sq, Hq * Dh) @ wo

    def _B_ref(x, k_cache, v_cache, wq, wo):
        B, Sq, D = x.shape
        Hq, Dh = 32, 128
        Hkv = k_cache.shape[1]
        rep = Hq // Hkv
        q = (lambda x, *d: x.permute(*d))((x @ wq).reshape(B, Sq, Hq, Dh), 0, 2, 1, 3)
        k = (lambda x, n, axis: torch.repeat_interleave(x, n, dim=axis))(k_cache, rep, axis=1)
        v = (lambda x, n, axis: torch.repeat_interleave(x, n, dim=axis))(v_cache, rep, axis=1)
        scores = torch.einsum("bhqd,bhkd->bhqk", q, k) * (Dh ** -0.5)
        p = _softmax(scores, axis=-1)
        o = torch.einsum("bhqk,bhkd->bhqd", p, v)
        return (lambda x, *d: x.permute(*d))(o, 0, 2, 1, 3).reshape(B, Sq, Hq * Dh) @ wo

    a = _A_ref(A_x, A_k_cache, A_v_cache, A_wq, A_wo)
    b = _B_ref(B_x, B_k_cache, B_v_cache, B_wq, B_wo)
    return torch.concatenate([a, b], axis=-1)
```

```python
import re

def R(base, n=1, acc=False):
    p = 'a' if acc else 'v'
    return f"{p}{base}" if n == 1 else f"{p}[{base}:{base+n-1}]"

_rx = re.compile(r'\b([va])(?:\[(\d+):(\d+)\]|(\d+))')
def regs_of(s):
    out = []
    for m in _rx.finditer(s):
        off = 256 if m.group(1) == 'a' else 0
        if m.group(2) is not None:
            out += list(range(off + int(m.group(2)), off + int(m.group(3)) + 1))
        else:
            out.append(off + int(m.group(4)))
    return out

TRANS = ('v_exp_f32', 'v_log_f32', 'v_rcp_f32', 'v_rsq_f32', 'v_sqrt_f32')

class Asm:
    def __init__(self):
        self.lines = []
        self.reset_state()
        self.nlabel = 0
    def reset_state(self):
        self.pos = 0
        self.valu_w = {}
        self.trans_w = {}
        self.mfma_w = {}
        self.mfma_c = {}
        self.store_r = {}
        self.sgpr_valu_w = {}
        self.m0_w = -100
        self.lds = []
        self.vm = []
    def raw(self, text, states=1):
        self.lines.append("    " + text)
        self.pos += states
    def comment(self, t):
        self.lines.append("    ; " + t)
    def label(self, name):
        self.lines.append(name + ":")
    def nop(self, n):
        while n > 0:
            k = min(n, 16)
            self.raw(f"s_nop {k-1}", k)
            n -= k
    def wait_lgkm(self, n):
        n = min(n, 15)
        if len(self.lds) > n:
            self.raw(f"s_waitcnt lgkmcnt({n})")
            self.lds = self.lds[len(self.lds) - n:] if n else []
    def wait_vm(self, n):
        n = min(n, 63)
        if len(self.vm) > n:
            self.raw(f"s_waitcnt vmcnt({n})")
            self.vm = self.vm[len(self.vm) - n:] if n else []
    def wait_vm_tag(self, tag):
        idx = -1
        for i, (t, _) in enumerate(self.vm):
            if t == tag: idx = i
        if idx >= 0:
            self.wait_vm(len(self.vm) - 1 - idx)
    def _mem_deps(self, regs):
        regs = set(regs)
        idx = -1
        for i, d in enumerate(self.lds):
            if d & regs: idx = i
        if idx >= 0: self.wait_lgkm(len(self.lds) - 1 - idx)
        idx = -1
        for i, (_, d) in enumerate(self.vm):
            if d & regs: idx = i
        if idx >= 0: self.wait_vm(len(self.vm) - 1 - idx)
    def _need(self, req):
        n = 0
        for p, k in req:
            have = self.pos - p - 1
            n = max(n, k - have)
        if n > 0: self.nop(n)
    def _mfma_d_dist(self, passes):
        return {2: 5, 4: 8, 8: 12, 16: 20}[passes]
    def valu(self, op, dst, *srcs, rmw=False, mods=""):
        W = regs_of(dst); Rd = []
        for s in srcs: Rd += regs_of(s)
        if rmw or op.startswith('v_permlane') : Rd += W
        if op.startswith('v_permlane'):
            W = W + regs_of(srcs[0])
        self._mem_deps(W + Rd)
        req = []
        for r in Rd + W:
            if r in self.mfma_w:
                p, ps = self.mfma_w[r][:2]; req.append((p, self._mfma_d_dist(ps)))
        for r in W:
            if r in self.mfma_c:
                p, ps = self.mfma_c[r]; req.append((p, {2: 1, 4: 3, 8: 7, 16: 15}[ps]))
            if r in self.store_r: req.append((self.store_r[r], 2))
        if op not in TRANS:
            for r in Rd:
                if r in self.trans_w: req.append((self.trans_w[r], 1))
        if op.startswith('v_permlane'):
            for r in Rd:
                if r in self.valu_w: req.append((self.valu_w[r], 2))
        if op.startswith('v_readfirstlane') or op.startswith('v_readlane'):
            for r in Rd:
                if r in self.valu_w: req.append((self.valu_w[r], 1))
        for s in srcs:
            if s in self.sgpr_valu_w: req.append((self.sgpr_valu_w[s], 2))
        self._need(req)
        p = self.pos
        self.raw(f"{op} {dst}, " + ", ".join(srcs) + mods)
        for r in W:
            self.valu_w[r] = p
            self.mfma_w.pop(r, None)
            if op in TRANS: self.trans_w[r] = p
            else: self.trans_w.pop(r, None)
        if not W:
            self.sgpr_valu_w[dst] = p
    def mfma(self, op, D, A, B, C):
        passes = 8 if '32x32' in op else 4
        d = regs_of(D); a = regs_of(A); b = regs_of(B); c = regs_of(C)
        self._mem_deps(d + a + b + c)
        req = []
        for r in a + b + c:
            if r in self.valu_w: req.append((self.valu_w[r], 2))
        for r in a + b:
            if r in self.mfma_w:
                p, ps = self.mfma_w[r][:2]; req.append((p, self._mfma_d_dist(ps)))
        for r in c:
            if r in self.mfma_w:
                p, ps, db, dn = self.mfma_w[r]
                if db == c[0] and dn == len(c) and ps == passes: pass
                else: req.append((p, {2: 4, 4: 6, 8: 10, 16: 18}[ps]))
        if D != C:
            for r in d:
                if r in self.mfma_w:
                    p, ps = self.mfma_w[r][:2]; req.append((p, {2: 4, 4: 6, 8: 10, 16: 18}[ps]))
        self._need(req)
        p = self.pos
        self.raw(f"{op} {D}, {A}, {B}, {C}")
        for r in d:
            self.mfma_w[r] = (p, passes, d[0], len(d)); self.valu_w.pop(r, None); self.trans_w.pop(r, None)
        for r in c: self.mfma_c[r] = (p, passes)
    def _mem_common(self, Rd, W):
        self._mem_deps(Rd + W)
        req = []
        for r in Rd + W:
            if r in self.mfma_w:
                p, ps = self.mfma_w[r][:2]; req.append((p, self._mfma_d_dist(ps)))
        for r in W:
            if r in self.mfma_c:
                p, ps = self.mfma_c[r]; req.append((p, {2: 1, 4: 3, 8: 7, 16: 15}[ps]))
            if r in self.store_r: req.append((self.store_r[r], 1))
        self._need(req)
    def ds_read(self, op, dst, addr, off=0):
        assert 0 <= off < 65536, off
        W = regs_of(dst); Rd = regs_of(addr)
        self._mem_common(Rd, W)
        self.raw(f"{op} {dst}, {addr} offset:{off}")
        for r in W:
            self.mfma_w.pop(r, None); self.valu_w.pop(r, None); self.trans_w.pop(r, None)
        self.lds.append(set(W))
    def ds_write(self, op, addr, src, off=0):
        assert 0 <= off < 65536, off
        Rd = regs_of(addr) + regs_of(src)
        self._mem_common(Rd, [])
        self.raw(f"{op} {addr}, {src} offset:{off}")
        self.lds.append(set())
    def _sreq(self, *sregs):
        req = []
        for s in sregs:
            for k, p in self.sgpr_valu_w.items():
                if k == s: req.append((p, 5))
        self._need(req)
    def buf_load(self, op, dst, voff, srd, soff, off=0, tag=None, flags=""):
        assert 0 <= off < 4096, off
        W = regs_of(dst); Rd = regs_of(voff)
        self._mem_common(Rd, W)
        self._sreq(soff)
        self.raw(f"{op} {dst}, {voff}, {srd}, {soff} offen offset:{off}{flags}")
        for r in W:
            self.mfma_w.pop(r, None); self.valu_w.pop(r, None); self.trans_w.pop(r, None)
        self.vm.append((tag, set(W)))
    def buf_load_lds(self, voff, srd, soff, off=0, tag=None, flags=""):
        assert 0 <= off < 4096, off
        self._mem_common(regs_of(voff), [])
        self._sreq(soff)
        self._need([(self.m0_w, 1)])
        self.raw(f"buffer_load_dwordx4 {voff}, {srd}, {soff} offen offset:{off}{flags} lds")
        self.vm.append((tag, set()))
    def buf_store(self, op, src, voff, srd, soff, off=0, tag=None, flags=""):
        assert 0 <= off < 4096, off
        Rd = regs_of(voff) + regs_of(src)
        self._mem_common(Rd, [])
        self._sreq(soff)
        p = self.pos
        self.raw(f"{op} {src}, {voff}, {srd}, {soff} offen offset:{off}{flags}")
        if 'x4' in op or 'x3' in op:
            for r in regs_of(src): self.store_r[r] = p
        self.vm.append((tag, set()))
    def salu(self, text):
        p = self.pos
        self.raw(text)
        if re.match(r'\s*s_\w+\s+m0\b', text): self.m0_w = p
    def barrier(self):
        self.raw("s_barrier")
    def settle(self, n=20):
        self.nop(n)
    def text(self):
        return "\n".join(self.lines) + "\n"
```

```python
import sys
from asmlib import *

NAME = "concat_heads__gqa_block_cached__gqa_block_cached__near_ridge"
WS_BYTES = 289931264
WOT_OFF = 2 * 16 * 9 * 128 * 1024
SCALE = 1.4426950408889634 / (128 ** 0.5)
import struct
def f32hex(x): return "0x%08x" % struct.unpack("<I", struct.pack("<f", x))[0]

M32 = "v_mfma_f32_32x32x16_bf16"
M16 = "v_mfma_f32_16x16x32_bf16"
M16h = "v_mfma_f32_16x16x16_bf16"

OPT = dict(kv_flags="", thr=8.0)

def gen_k1(a: Asm, opt):
    Qf = 8; Q9f = 40; O = 56; O9 = 120; S = 152; S9 = 184; NM = 188; NM9 = 204
    FB = 208; NFB = 6
    aK = [232, 233, 234, 235]; aK9 = [236, 237]; aV = [238, 239]; aV9 = [240, 241]
    vK = 242; vV = 243; vl = 244; vl9 = 245
    T0, T1, T2, T3, T4, T5 = 246, 247, 248, 249, 250, 251
    vlane = 252; vI16 = 253; vG = 254; vT6 = 255
    XB = 128; WFB = 8; NWFB = 8
    aW = [224, 225]; aW9 = 226; vW = 227; vx = 228; vx9 = 229
    sX, sK, sV, sWq, sWo, sWs = "s[44:47]", "s[48:51]", "s[52:55]", "s[56:59]", "s[60:63]", "s[64:67]"
    sW = "s68"; sW1K = "s69"; sKV = "s70"; sWoff = "s71"; sXoff = "s72"; sOoff = "s73"; sTmp = "s74"; sTmp2 = "s75"
    sH = "s76"; sB = "s77"; sBlk = "s78"; sBB = "s79"; sJob = "s80"; sPb = "s81"

    a.salu("s_cmp_ge_u32 s2, 1024")
    a.raw("s_cbranch_scc1 L_k1_end")
    a.raw("s_load_dwordx16 s[16:31], s[0:1], 0")
    a.raw("s_load_dwordx8 s[32:39], s[0:1], 64")
    a.raw("s_load_dwordx2 s[40:41], s[0:1], 96")
    a.salu(f"s_lshr_b32 {sBlk}, s2, 9")
    a.salu(f"s_and_b32 {sTmp}, s2, 7")
    a.salu(f"s_bfe_u32 {sTmp2}, s2, 0x60003")
    a.salu(f"s_and_b32 {sH}, {sTmp}, 3")
    a.salu(f"s_lshl_b32 {sH}, {sH}, 3")
    a.salu(f"s_and_b32 s82, {sTmp2}, 7")
    a.salu(f"s_add_u32 {sH}, {sH}, s82")
    a.salu(f"s_lshr_b32 {sB}, {sTmp}, 2")
    a.salu(f"s_lshl_b32 {sB}, {sB}, 3")
    a.salu(f"s_lshr_b32 s82, {sTmp2}, 3")
    a.salu(f"s_add_u32 {sB}, {sB}, s82")
    a.salu(f"s_lshl_b32 {sBB}, {sBlk}, 4")
    a.salu(f"s_add_u32 {sBB}, {sBB}, {sB}")
    a.valu("v_lshrrev_b32", "v1", "6", "v0")
    a.valu("v_and_b32", R(vlane), "63", "v0")
    a.valu("v_readfirstlane_b32", sW, "v1")
    a.raw("s_waitcnt lgkmcnt(0)")
    a.salu(f"s_cmp_eq_u32 {sBlk}, 0")
    for srd, pa, pb, n in ((44, 16, 26, 16*144*512*2), (48, 18, 28, 1 << 26), (52, 20, 30, 1 << 26),
                           (56, 22, 32, 512*4096*2), (60, 24, 34, 4096*512*2)):
        a.salu(f"s_cselect_b32 s{srd}, s{pa}, s{pb}")
        a.salu(f"s_cselect_b32 s{srd+1}, s{pa+1}, s{pb+1}")
        a.salu(f"s_mov_b32 s{srd+2}, {n}")
        a.salu(f"s_mov_b32 s{srd+3}, 0x00020000")
    a.salu("s_mov_b32 s64, s40"); a.salu("s_mov_b32 s65, s41")
    a.salu(f"s_mov_b32 s66, {WS_BYTES}"); a.salu("s_mov_b32 s67, 0x00020000")
    a.salu(f"s_lshl_b32 {sW1K}, {sW}, 10")
    a.salu(f"s_lshl_b32 {sKV}, {sB}, 5"); a.salu(f"s_add_u32 {sKV}, {sKV}, {sH}"); a.salu(f"s_lshl_b32 {sKV}, {sKV}, 17")
    a.salu(f"s_lshl_b32 {sWoff}, {sH}, 8")
    a.salu(f"s_mul_i32 {sXoff}, {sB}, 147456")
    a.salu(f"s_mul_i32 {sOoff}, {sBB}, 9"); a.salu(f"s_lshl_b32 {sTmp}, {sW}, 1"); a.salu(f"s_add_u32 {sOoff}, {sOoff}, {sTmp}")
    a.salu(f"s_lshl_b32 {sOoff}, {sOoff}, 17"); a.salu(f"s_lshl_b32 {sTmp}, {sH}, 12"); a.salu(f"s_add_u32 {sOoff}, {sOoff}, {sTmp}")

    L = R(vlane)
    def bfe(dst, lo, n, src=L): a.valu("v_bfe_u32", dst, src, str(lo), str(n))
    def lsa(dst, x, sh, y): a.valu("v_lshl_add_u32", dst, x, str(sh), y)
    q32, hh, r_, c4lo, c4hi, G1, rhi = "v1", "v2", "v3", "v4", "v5", "v6", "v7"
    bfe(q32, 0, 5); bfe(hh, 5, 1); bfe(r_, 2, 2); bfe(c4lo, 0, 1); bfe(c4hi, 1, 1); bfe(G1, 4, 1); bfe(rhi, 3, 1)
    bfe(R(vI16), 0, 4); bfe(R(vG), 4, 2)
    t0, t1, t2, t3 = R(T0), R(T1), R(T2), R(T3)
    a.salu(f"s_lshl_b32 {sTmp}, {sW}, 15")
    a.valu("v_lshlrev_b32", t0, "10", q32); lsa(t0, hh, 4, t0); a.valu("v_add_u32", R(vx), sTmp, t0)
    a.valu("v_lshlrev_b32", t0, "10", R(vI16)); lsa(t0, R(vG), 4, t0); a.valu("v_add_u32", R(vx9), "0x20000", t0)
    bfe(t0, 3, 3)
    bfe(t1, 0, 3)
    bfe(t2, 4, 1)
    a.valu("v_lshlrev_b32", t2, "2", t2)
    a.valu("v_xor_b32", t2, t1, t2)
    a.valu("v_lshlrev_b32", t2, "4", t2)
    a.salu(f"s_lshl_b32 {sTmp}, {sW}, 16")
    lsa(t3, t0, 13, t2); a.valu("v_add_u32", R(vW), sTmp, t3)
    a.salu(f"s_lshl_b32 {sTmp}, {sW}, 11")
    lsa(t3, t0, 8, t2); a.valu("v_add_u32", R(vV), sTmp, t3)
    bfe(t2, 4, 2)
    a.salu(f"s_and_b32 {sTmp2}, {sW}, 1"); a.salu(f"s_lshl_b32 {sTmp2}, {sTmp2}, 2")
    a.valu("v_add_u32", t2, sTmp2, t2)
    a.valu("v_xor_b32", t2, t1, t2)
    a.valu("v_lshlrev_b32", t2, "4", t2)
    lsa(t3, t0, 8, t2); a.valu("v_add_u32", R(vK), sTmp, t3)

    NCH = 25
    slot_of = {}
    free = [0, 1, 2, 3, 4]
    state = dict(next=0)
    def issue_chunk():
        n = state['next']; state['next'] += 1
        sl = free.pop(0); slot_of[n] = sl
        base = sl * 16384
        if n < 24:
            if n < 8:
                srd, vo, d2 = sWq, R(vW), 262144
                a.salu(f"s_add_u32 {sTmp}, {sWoff}, {n * 524288}")
                fl = ""
            else:
                i = (n - 8) // 2
                srd, vo, d2 = (sK, R(vK), 8192) if n % 2 == 0 else (sV, R(vV), 8192)
                a.salu(f"s_add_u32 {sTmp}, {sKV}, {i * 16384}")
                fl = opt['kv_flags']
            a.salu(f"s_add_u32 {sTmp2}, {sTmp}, {d2}")
            for (so, ioff, ld) in ((sTmp, 0, 0), (sTmp, 128, 8192), (sTmp2, 0, 4096), (sTmp2, 128, 12288)):
                a.salu(f"s_add_u32 m0, {sW1K}, {base + ld - ioff}")
                a.buf_load_lds(vo, srd, so, ioff, tag=n, flags=fl)
        else:
            a.salu(f"s_and_b32 {sJob}, s2, 511")
            a.salu(f"s_lshr_b32 {sTmp}, {sJob}, 3")
            a.salu(f"s_lshl_b32 {sTmp}, {sTmp}, 16")
            a.salu(f"s_and_b32 {sTmp2}, {sJob}, 7")
            a.salu(f"s_lshl_b32 {sTmp2}, {sTmp2}, 7")
            a.salu(f"s_add_u32 {sTmp}, {sTmp}, {sTmp2}")
            a.salu(f"s_add_u32 {sTmp2}, {sTmp}, 32768")
            bfe(R(T4), 3, 3); bfe(R(T5), 0, 3); bfe(R(vT6), 4, 1)
            a.valu("v_lshlrev_b32", R(vT6), "2", R(vT6)); a.valu("v_xor_b32", R(T5), R(T5), R(vT6))
            a.valu("v_lshlrev_b32", R(T5), "4", R(T5)); lsa(R(T5), R(T4), 10, R(T5))
            a.salu(f"s_lshl_b32 s82, {sW}, 13")
            a.valu("v_add_u32", R(T5), "s82", R(T5))
            for (so, ld) in ((sTmp, 0), (sTmp2, 4096)):
                a.salu(f"s_add_u32 m0, {sW1K}, {base + ld}")
                a.buf_load_lds(R(T5), sWo, so, 0, tag=n)
    def issue_free(maxn=5):
        k = 0
        while free and state['next'] < NCH and k < maxn:
            issue_chunk(); k += 1
    def xload(c):
        xb = XB + (c % 4) * 24
        for s in range(4):
            a.buf_load("buffer_load_dwordx4", R(xb + 4 * s, 4), R(vx), sX, sXoff, (4 * c + s) * 32)
        for s2 in range(2):
            a.buf_load("buffer_load_dwordx4", R(xb + 16 + 4 * s2, 4), R(vx9), sX, sXoff, (2 * c + s2) * 64)

    for c in range(4):
        xload(c); issue_chunk()
    issue_chunk()

    a.valu("v_lshlrev_b32", t0, "6", rhi); lsa(t0, G1, 5, t0); lsa(t0, c4lo, 4, t0); lsa(t0, c4hi, 3, t0); lsa(t0, r_, 7, t0)
    lsa(R(aW[0]), hh, 10, t0); a.valu("v_xor_b32", R(aW[1]), "64", R(aW[0]))
    lsa(R(aV[0]), hh, 9, t0); a.valu("v_xor_b32", R(aV[1]), "64", R(aV[0]))
    a.valu("v_lshlrev_b32", t1, "6", rhi); lsa(t1, c4hi, 4, t1); lsa(t1, c4lo, 3, t1); lsa(t1, r_, 7, t1)
    a.salu(f"s_and_b32 {sTmp}, {sW}, 1"); a.salu(f"s_lshl_b32 {sTmp}, {sTmp}, 6")
    a.valu("v_xor_b32", t2, sTmp, t1); lsa(t2, R(vG), 10, t2)
    a.salu(f"s_lshr_b32 {sTmp}, {sW}, 1"); a.salu(f"s_lshl_b32 {sTmp}, {sTmp}, 13")
    a.valu("v_add_u32", R(aW9), sTmp, t2)
    lsa(t2, G1, 9, t1); lsa(t2, hh, 10, t2)
    a.salu(f"s_lshl_b32 {sTmp}, {sW}, 11")
    a.valu("v_add_u32", R(aV9[0]), sTmp, t2); a.valu("v_xor_b32", R(aV9[1]), "64", R(aV9[0]))
    bfe(t0, 3, 2); a.valu("v_lshlrev_b32", t0, "10", t0); bfe(t1, 0, 3); lsa(t0, t1, 7, t0)
    bfe(t1, 1, 3); a.valu("v_xor_b32", t1, t1, hh)
    for j in range(4):
        a.valu("v_xor_b32", t2, str(2 * j), t1); lsa(R(aK[j]), t2, 4, t0)
    bfe(t0, 3, 1); a.valu("v_lshlrev_b32", t0, "10", t0); bfe(t1, 0, 3); lsa(t0, t1, 7, t0)
    a.valu("v_add_u32", t0, sTmp, t0)
    bfe(t1, 1, 3); a.valu("v_xor_b32", t1, t1, R(vG))
    for j in range(2):
        a.valu("v_xor_b32", t2, str(4 * j), t1); lsa(R(aK9[j]), t2, 4, t0)

    bias = {}
    def use_slot(regs, sl):
        want = 65536 if sl == 4 else 0
        for r in regs:
            cur = bias.get(r, 0)
            if cur != want:
                if want: a.valu("v_add_u32", R(r), "0x10000", R(r))
                else: a.valu("v_subrev_u32", R(r), "0x10000", R(r))
                bias[r] = want
        return sl * 16384 - want

    def run_gemm(items, fb, nfb, pre_done=0):
        n = len(items)
        for k in range(pre_done, min(nfb, n)):
            items[k][0](fb + 4 * (k % nfb))
        for k in range(n):
            items[k][1](fb + 4 * (k % nfb))
            if k + nfb < n: items[k + nfb][0](fb + 4 * ((k + nfb) % nfb))

    for c in range(8):
        a.comment(f"Q-step {c}")
        a.wait_vm_tag(c); a.wait_lgkm(0); a.barrier()
        if c >= 1:
            free.append(slot_of[c - 1])
            if c + 3 <= 7: xload(c + 3)
            if c < 7: issue_free(1)
        base = use_slot(aW + [aW9], slot_of[c])
        xb = XB + (c % 4) * 24
        items = []
        for s in range(4):
            for T in range(4):
                def rd(buf, T=T, s=s):
                    for j in range(2):
                        a.ds_read("ds_read_b64_tr_b16", R(buf + 2 * j, 2), R(aW[T & 1]), base + (T >> 1) * 8192 + s * 2048 + j * 512)
                def mf(buf, T=T, s=s):
                    C = "0" if (c == 0 and s == 0) else R(O + 16 * T, 16)
                    a.mfma(M32, R(O + 16 * T, 16), R(buf, 4), R(xb + 4 * s, 4), C)
                items.append((rd, mf))
            if s % 2 == 1:
                s2 = s // 2
                for t in range(2):
                    def rd(buf, t=t, s2=s2):
                        for j in range(2):
                            a.ds_read("ds_read_b64_tr_b16", R(buf + 2 * j, 2), R(aW9), base + s2 * 4096 + j * 512 + t * 32)
                    def mf(buf, t=t, s2=s2):
                        C = "0" if (c == 0 and s2 == 0) else R(O9 + 4 * t, 4)
                        a.mfma(M16, R(O9 + 4 * t, 4), R(buf, 4), R(xb + 16 + 4 * s2, 4), C)
                    items.append((rd, mf))
        run_gemm(items, WFB, NWFB)
    sc = "s83"
    a.salu(f"s_mov_b32 {sc}, {f32hex(SCALE)}")
    q9slot = free.pop(0)
    for i in range(8): a.valu("v_mul_f32", R(O9 + i), sc, R(O9 + i))
    for t in range(2):
        for j in range(2):
            a.valu("v_cvt_pk_bf16_f32", R(O9 + 8 + 2 * t + j), R(O9 + 4 * t + 2 * j), R(O9 + 4 * t + 2 * j + 1))
    a.valu("v_mul_u32_u24", t0, "272", R(vI16))
    lsa(t1, R(vG), 3, t0)
    a.salu(f"s_lshl_b32 {sTmp}, {sW}, 6"); a.salu(f"s_add_u32 {sTmp}, {sTmp}, {q9slot * 16384}")
    a.valu("v_add_u32", t1, sTmp, t1)
    for t in range(2):
        a.ds_write("ds_write_b64", t1, R(O9 + 8 + 2 * t, 2), t * 32)
    lsa(R(T4), R(vG), 4, t0); a.valu("v_add_u32", R(T4), str(q9slot * 16384), R(T4))
    for i in range(64): a.valu("v_mul_f32", R(O + i), sc, R(O + i))
    for T in range(4):
        for j in range(8):
            a.valu("v_cvt_pk_bf16_f32", R(Qf + 8 * T + j), R(O + 16 * T + 2 * j), R(O + 16 * T + 2 * j + 1))
    slow_blocks = []
    for i in range(8):
        nk = 8 + 2 * i; nv = nk + 1
        a.wait_vm_tag(nk); a.wait_lgkm(0); a.barrier()
        free.append(slot_of[nk - 1]); issue_free(1)
        if i == 0:
            for s2 in range(4):
                a.ds_read("ds_read_b128", R(Q9f + 4 * s2, 4), R(T4), s2 * 64)
        base = use_slot(aK + aK9, slot_of[nk])
        items = []
        for kt in range(2):
            for s in range(8):
                def rd(buf, kt=kt, s=s):
                    a.ds_read("ds_read_b128", R(buf, 4), R(aK[s & 3]), base + (s >> 2) * 8192 + kt * 4096)
                def mf(buf, kt=kt, s=s):
                    C = R(S + 16 * kt, 16) if s else ("0" if i == 0 else R(NM, 16))
                    a.mfma(M32, R(S + 16 * kt, 16), R(buf, 4), R(Qf + 4 * s, 4), C)
                items.append((rd, mf))
        for s2 in range(4):
            def rd(buf, s2=s2):
                a.ds_read("ds_read_b128", R(buf, 4), R(aK9[s2 & 1]), base + (s2 >> 1) * 8192)
            def mf(buf, s2=s2):
                C = R(S9, 4) if s2 else ("0" if i == 0 else R(NM9, 4))
                a.mfma(M16, R(S9, 4), R(buf, 4), R(Q9f + 4 * s2, 4), C)
            items.append((rd, mf))
        run_gemm(items, FB, NFB)
        a.wait_vm_tag(nv); a.wait_lgkm(0); a.barrier()
        free.append(slot_of[nk])
        if i == 0: free.append(q9slot)
        issue_free(2)
        base = use_slot(aV + aV9, slot_of[nv])
        vitems = []
        for kt in range(2):
            for u in range(2):
                for T in range(4):
                    def rd(buf, kt=kt, u=u, T=T):
                        for j in range(2):
                            a.ds_read("ds_read_b64_tr_b16", R(buf + 2 * j, 2), R(aV[T & 1]), base + (T >> 1) * 8192 + (4 * kt + 2 * u + j) * 1024)
                    def mf(buf, kt=kt, u=u, T=T):
                        C = "0" if (i == 0 and kt == 0 and u == 0) else R(O + 16 * T, 16)
                        a.mfma(M32, R(O + 16 * T, 16), R(buf, 4), R(S + 16 * kt + 4 * u, 4), C)
                    vitems.append((rd, mf))
        for Tp in range(4):
            def rd(buf, Tp=Tp):
                for z in range(2):
                    T8 = 2 * Tp + z
                    a.ds_read("ds_read_b64_tr_b16", R(buf + 2 * z, 2), R(aV9[(T8 >> 1) & 1]), base + (T8 >> 2) * 8192 + (T8 & 1) * 32)
            def mf(buf, Tp=Tp):
                for z in range(2):
                    T8 = 2 * Tp + z
                    C = "0" if i == 0 else R(O9 + 4 * T8, 4)
                    a.mfma(M16h, R(O9 + 4 * T8, 4), R(buf + 2 * z, 2), R(S9, 2), C)
            vitems.append((rd, mf))
        for k in range(NFB): vitems[k][0](FB + 4 * k)
        a.valu("v_max3_f32", t0, R(S), R(S + 1), R(S + 2))
        for k in range(3, 31, 2): a.valu("v_max3_f32", t0, t0, R(S + k), R(S + k + 1))
        a.valu("v_max_f32", t0, t0, R(S + 31))
        a.valu("v_max3_f32", t1, R(S9), R(S9 + 1), R(S9 + 2)); a.valu("v_max_f32", t1, t1, R(S9 + 3))
        def fullmax():
            a.valu("v_mov_b32", t2, t0); a.valu("v_permlane32_swap_b32", t0, t2); a.valu("v_max_f32", t0, t0, t2)
            a.valu("v_mov_b32", t2, t1); a.valu("v_permlane32_swap_b32", t1, t2); a.valu("v_max_f32", t1, t1, t2)
            a.valu("v_mov_b32", t2, t1); a.valu("v_permlane16_swap_b32", t1, t2); a.valu("v_max_f32", t1, t1, t2)
        if i == 0:
            fullmax()
            for k in range(32): a.valu("v_sub_f32", R(S + k), R(S + k), t0)
            for k in range(4): a.valu("v_sub_f32", R(S9 + k), R(S9 + k), t1)
            for k in range(16): a.valu("v_sub_f32", R(NM + k), "0", t0)
            for k in range(4): a.valu("v_sub_f32", R(NM9 + k), "0", t1)
        else:
            a.valu("v_max_f32", t2, t0, t1)
            a.valu("v_cmp_lt_f32", "vcc", f32hex(opt['thr']), t2)
            a.nop(2)
            a.raw(f"s_cbranch_vccnz L_slow_{i}")
            a.label(f"L_back_{i}")
            sb = Asm()
            sb.label(f"L_slow_{i}")
            sb.nop(16)
            _a = a
            def emit_slow(a=sb):
                a.valu("v_mov_b32", t2, t0); a.valu("v_permlane32_swap_b32", t0, t2); a.valu("v_max_f32", t0, t0, t2)
                a.valu("v_mov_b32", t2, t1); a.valu("v_permlane32_swap_b32", t1, t2); a.valu("v_max_f32", t1, t1, t2)
                a.valu("v_mov_b32", t2, t1); a.valu("v_permlane16_swap_b32", t1, t2); a.valu("v_max_f32", t1, t1, t2)
                a.valu("v_max_f32", t0, "0", t0); a.valu("v_max_f32", t1, "0", t1)
                for k in range(32): a.valu("v_sub_f32", R(S + k), R(S + k), t0)
                for k in range(4): a.valu("v_sub_f32", R(S9 + k), R(S9 + k), t1)
                for k in range(16): a.valu("v_sub_f32", R(NM + k), R(NM + k), t0)
                for k in range(4): a.valu("v_sub_f32", R(NM9 + k), R(NM9 + k), t1)
                a.valu("v_sub_f32", t0, "0", t0); a.valu("v_sub_f32", t1, "0", t1)
                a.valu("v_exp_f32", t0, t0); a.valu("v_exp_f32", t1, t1)
                for k in range(64): a.valu("v_mul_f32", R(O + k), R(O + k), t0)
                for k in range(32): a.valu("v_mul_f32", R(O9 + k), R(O9 + k), t1)
                a.valu("v_mul_f32", R(vl), R(vl), t0); a.valu("v_mul_f32", R(vl9), R(vl9), t1)
                a.nop(8)
                a.raw(f"s_branch L_back_{i}")
            emit_slow()
            slow_blocks.append(sb)
        for k in range(4): a.valu("v_exp_f32", R(S9 + k), R(S9 + k))
        for k in range(2): a.valu("v_exp_f32", R(S + k), R(S + k))
        for k in range(4):
            if i == 0 and k == 0: a.valu("v_mov_b32", R(vl9), R(S9))
            else: a.valu("v_add_f32", R(vl9), R(vl9), R(S9 + k))
        for j in range(2): a.valu("v_cvt_pk_bf16_f32", R(S9 + j), R(S9 + 2 * j), R(S9 + 2 * j + 1))
        for k in range(0, 32, 2):
            if k + 2 < 32:
                a.valu("v_exp_f32", R(S + k + 2), R(S + k + 2)); a.valu("v_exp_f32", R(S + k + 3), R(S + k + 3))
            if i == 0 and k == 0: a.valu("v_add_f32", R(vl), R(S), R(S + 1))
            else:
                a.valu("v_add_f32", R(vl), R(vl), R(S + k)); a.valu("v_add_f32", R(vl), R(vl), R(S + k + 1))
            kt = k // 16; kk = k % 16
            a.valu("v_cvt_pk_bf16_f32", R(S + 16 * kt + kk // 2), R(S + k), R(S + k + 1))
        run_gemm(vitems, FB, NFB, pre_done=NFB)

    smap = sorted(free)
    assert len(smap) >= 2, smap
    pA, pB = smap[0] * 16384, smap[1] * 16384
    wob = slot_of[24] * 16384
    sbuf = wob + 8192
    a.valu("v_mov_b32", t2, R(vl9)); a.valu("v_permlane32_swap_b32", R(vl9), t2); a.valu("v_add_f32", R(vl9), R(vl9), t2)
    a.valu("v_mov_b32", t2, R(vl9)); a.valu("v_permlane16_swap_b32", R(vl9), t2); a.valu("v_add_f32", R(T1), R(vl9), t2)
    a.valu("v_sub_f32", R(T0), "0", R(NM9))
    a.salu(f"s_lshl_b32 {sTmp}, {sW}, 7"); a.salu(f"s_add_u32 {sTmp}, {sTmp}, {sbuf}")
    a.valu("v_lshlrev_b32", t2, "3", R(vI16)); a.valu("v_add_u32", t3, sTmp, t2)
    a.ds_write("ds_write_b64", t3, R(T0, 2), 0)
    a.valu("v_add_u32", R(T4), str(sbuf), t2)
    a.salu(f"s_cmp_lt_u32 {sW}, 2"); a.salu(f"s_cselect_b32 {sPb}, {pA}, {pB}")
    a.salu(f"s_and_b32 {sTmp}, {sW}, 1"); a.salu(f"s_lshl_b32 {sTmp}, {sTmp}, 13"); a.salu(f"s_add_u32 {sPb}, {sPb}, {sTmp}")
    a.valu("v_lshlrev_b32", R(T5), "4", L); a.valu("v_add_u32", t3, sPb, R(T5))
    for T8 in range(8): a.ds_write("ds_write_b128", t3, R(O9 + 4 * T8, 4), T8 * 1024)
    a.valu("v_mov_b32", t2, R(vl)); a.valu("v_permlane32_swap_b32", R(vl), t2); a.valu("v_add_f32", R(vl), R(vl), t2)
    a.valu("v_rcp_f32", R(vl), R(vl))
    bfe(t0, 4, 1); a.valu("v_lshlrev_b32", t0, "17", t0); bfe(t1, 5, 1); lsa(t0, t1, 8, t0); lsa(t0, R(vI16), 4, t0)
    for T in range(4):
        for k in range(16): a.valu("v_mul_f32", R(O + 16 * T + k), R(O + 16 * T + k), R(vl))
        for j in range(8): a.valu("v_cvt_pk_bf16_f32", R(S + 8 * T + j), R(O + 16 * T + 2 * j), R(O + 16 * T + 2 * j + 1))
        for u in range(2):
            a.buf_store("buffer_store_dwordx4", R(S + 8 * T + 4 * u, 4), t0, sWs, sOoff, T * 1024 + u * 512)
    a.wait_vm_tag(24); a.wait_lgkm(0); a.barrier()
    for w in range(4): a.ds_read("ds_read_b64", R(FB + 2 * w, 2), R(T4), w * 128)
    bfe(t1, 5, 1); a.valu("v_lshlrev_b32", t1, "10", t1); bfe(t2, 4, 1); lsa(t1, t2, 9, t1); lsa(t1, R(vI16), 4, t1)
    a.salu(f"s_lshl_b32 {sTmp}, {sW}, 11"); a.valu("v_add_u32", t1, sTmp, t1)
    a.valu("v_add_u32", t2, str(pB), t1); a.valu("v_add_u32", t1, str(pA), t1)
    for w in range(4):
        for jj in range(2):
            a.ds_read("ds_read_b128", R(O + 8 * w + 4 * jj, 4), t1 if w < 2 else t2, (w & 1) * 8192 + jj * 256)
    bfe(t0, 3, 1); a.valu("v_lshlrev_b32", t0, "6", t0)
    a.salu(f"s_lshl_b32 {sTmp}, {sW}, 5")
    a.valu("v_xor_b32", t0, sTmp, t0)
    bfe(t3, 1, 1); lsa(t0, t3, 4, t0); bfe(t3, 0, 1); lsa(t0, t3, 3, t0); bfe(t3, 2, 2); lsa(t0, t3, 7, t0); lsa(t0, R(vG), 10, t0)
    a.valu("v_add_u32", t0, str(wob), t0)
    for ks in range(2):
        for j in range(2):
            a.ds_read("ds_read_b64_tr_b16", R(O + 32 + 4 * ks + 2 * j, 2), t0, ks * 4096 + j * 512)
    m = [R(FB + 2 * w) for w in range(4)]; lw = [R(FB + 2 * w + 1) for w in range(4)]
    a.valu("v_max3_f32", t3, m[0], m[1], m[2]); a.valu("v_max_f32", t3, t3, m[3])
    for w in range(4): a.valu("v_sub_f32", m[w], m[w], t3)
    for w in range(4): a.valu("v_exp_f32", m[w], m[w])
    a.valu("v_mul_f32", t3, m[0], lw[0])
    for w in range(1, 4): a.valu("v_fma_f32", t3, m[w], lw[w], t3)
    a.valu("v_rcp_f32", t3, t3)
    for w in range(4): a.valu("v_mul_f32", m[w], m[w], t3)
    for e in range(8):
        a.valu("v_mul_f32", R(O + e), R(O + e), m[0])
        for w in range(1, 4): a.valu("v_fma_f32", R(O + e), R(O + 8 * w + e), m[w], R(O + e))
    for j in range(4): a.valu("v_cvt_pk_bf16_f32", R(O9 + j), R(O + 2 * j), R(O + 2 * j + 1))
    a.salu(f"s_mul_i32 {sTmp}, {sBB}, 9"); a.salu(f"s_add_u32 {sTmp}, {sTmp}, 8"); a.salu(f"s_lshl_b32 {sTmp}, {sTmp}, 17")
    a.salu(f"s_lshl_b32 {sTmp2}, {sH}, 12"); a.salu(f"s_add_u32 {sTmp}, {sTmp}, {sTmp2}"); a.salu(f"s_add_u32 {sTmp}, {sTmp}, {sW1K}")
    a.buf_store("buffer_store_dwordx4", R(O9, 4), R(T5), sWs, sTmp, 0)
    a.salu(f"s_and_b32 {sTmp}, {sJob}, 7"); a.salu(f"s_lshl_b32 {sTmp}, {sTmp}, 2"); a.salu(f"s_add_u32 {sTmp}, {sTmp}, {sW}")
    a.salu(f"s_lshl_b32 {sTmp2}, {sBlk}, 5"); a.salu(f"s_add_u32 {sTmp}, {sTmp}, {sTmp2}"); a.salu(f"s_lshl_b32 {sTmp}, {sTmp}, 17")
    a.salu(f"s_lshr_b32 {sTmp2}, {sJob}, 3"); a.salu(f"s_lshl_b32 {sTmp2}, {sTmp2}, 11"); a.salu(f"s_add_u32 {sTmp}, {sTmp}, {sTmp2}")
    a.salu(f"s_add_u32 {sTmp}, {sTmp}, {WOT_OFF}")
    for ks in range(2):
        a.buf_store("buffer_store_dwordx4", R(O + 32 + 4 * ks, 4), R(T5), sWs, sTmp, ks * 1024)
    a.label("L_k1_end")
    a.raw("s_endpgm")
    for sb in slow_blocks: a.lines += sb.lines

def gen_k2(a: Asm, opt):
    NB = 4; BUF = 32
    vA = list(range(4, 8)); vB = list(range(8, 17))
    sWs = "s[64:67]"; sOut = "s[60:63]"
    sW = "s68"; sBB = "s69"; sNq = "s70"; sBlk = "s71"; sK = "s72"; sTmp = "s74"; sTmp2 = "s75"
    a.salu("s_cmp_ge_u32 s2, 256")
    a.raw("s_cbranch_scc1 L_k2_end")
    a.raw("s_load_dwordx2 s[36:37], s[0:1], 80")
    a.raw("s_load_dwordx2 s[40:41], s[0:1], 96")
    a.salu(f"s_and_b32 {sBB}, s2, 7"); a.salu(f"s_lshl_b32 {sBB}, {sBB}, 2")
    a.salu(f"s_lshr_b32 {sTmp}, s2, 6"); a.salu(f"s_add_u32 {sBB}, {sBB}, {sTmp}")
    a.salu(f"s_bfe_u32 {sNq}, s2, 0x30003")
    a.salu(f"s_lshr_b32 {sBlk}, {sBB}, 4")
    a.valu("v_lshrrev_b32", "v1", "6", "v0")
    a.valu("v_and_b32", "v2", "63", "v0")
    a.valu("v_readfirstlane_b32", sW, "v1")
    a.valu("v_lshlrev_b32", "v3", "4", "v2")
    a.raw("s_waitcnt lgkmcnt(0)")
    a.salu("s_mov_b32 s64, s40"); a.salu("s_mov_b32 s65, s41")
    a.salu(f"s_mov_b32 s66, {WS_BYTES}"); a.salu("s_mov_b32 s67, 0x00020000")
    a.salu("s_mov_b32 s60, s36"); a.salu("s_mov_b32 s61, s37")
    a.salu(f"s_mov_b32 s62, {16*144*1024*2}"); a.salu("s_mov_b32 s63, 0x00020000")
    a.salu(f"s_lshl_b32 {sK}, {sW}, 15")
    a.salu(f"s_mul_i32 {sTmp}, {sBB}, 9"); a.salu(f"s_lshl_b32 {sTmp}, {sTmp}, 17")
    for qt in range(9):
        a.valu("v_add_u32", R(vB[qt]), sTmp, "v3")
        a.salu(f"s_add_u32 {sTmp}, {sTmp}, 131072")
    a.salu(f"s_lshl_b32 {sTmp}, {sBlk}, 5"); a.salu(f"s_lshl_b32 {sTmp2}, {sNq}, 2"); a.salu(f"s_add_u32 {sTmp}, {sTmp}, {sTmp2}")
    a.salu(f"s_lshl_b32 {sTmp}, {sTmp}, 17"); a.salu(f"s_add_u32 {sTmp}, {sTmp}, {WOT_OFF}")
    for nt in range(4):
        a.valu("v_add_u32", R(vA[nt]), sTmp, "v3")
        a.salu(f"s_add_u32 {sTmp}, {sTmp}, 131072")
    def loads(ks):
        b = BUF + 52 * (ks % NB)
        if ks % 4 == 0 and ks > 0: a.salu(f"s_add_u32 {sK}, {sK}, 4096")
        for nt in range(4): a.buf_load("buffer_load_dwordx4", R(b + 4 * nt, 4), R(vA[nt]), sWs, sK, (ks % 4) * 1024)
        for qt in range(9): a.buf_load("buffer_load_dwordx4", R(b + 16 + 4 * qt, 4), R(vB[qt]), sWs, sK, (ks % 4) * 1024)
    def acc(nt, qt): return R(4 * (nt * 9 + qt), 4, acc=True)
    for ks in range(NB): loads(ks)
    for ks in range(32):
        b = BUF + 52 * (ks % NB)
        for qt in range(9):
            for nt in range(4):
                a.mfma(M16, acc(nt, qt), R(b + 4 * nt, 4), R(b + 16 + 4 * qt, 4), "0" if ks == 0 else acc(nt, qt))
        if ks + NB < 32: loads(ks + NB)
    a.salu(f"s_mul_i32 {sTmp}, {sW}, {4*9*1024}")
    a.valu("v_add_u32", "v20", sTmp, "v3")
    for wsel in range(4):
        pass
    a.salu(f"s_cmp_eq_u32 {sW}, 0"); a.raw("s_cbranch_scc1 L_k2_w0")
    a.salu(f"s_cmp_eq_u32 {sW}, 1"); a.raw("s_cbranch_scc1 L_k2_w1")
    a.salu(f"s_cmp_eq_u32 {sW}, 2"); a.raw("s_cbranch_scc1 L_k2_w2")
    a.raw("s_branch L_k2_w3")
    blocks = []
    for w in range(4):
        s = Asm(); s.label(f"L_k2_w{w}"); s.nop(12)
        for nt in range(4):
            if nt == w: continue
            for qt in range(9):
                s.ds_write("ds_write_b128", "v20", acc(nt, qt), (nt * 9 + qt) * 1024)
        for qt in range(9):
            for e in range(4): s.valu("v_accvgpr_read_b32", R(BUF + 4 * qt + e), R(4 * (w * 9 + qt) + e, acc=True))
        s.wait_lgkm(0); s.barrier()
        others = [o for o in range(4) if o != w]
        for oi, o in enumerate(others):
            s.valu("v_add_u32", R(21 + oi), str((o * 4 + w) * 9 * 1024), "v3")
            for qt in range(9):
                s.ds_read("ds_read_b128", R(BUF + 36 * (oi + 1) + 4 * qt, 4), R(21 + oi), qt * 1024)
        for oi in range(3):
            for k in range(36): s.valu("v_add_f32", R(BUF + k), R(BUF + k), R(BUF + 36 * (oi + 1) + k))
        s.raw("s_branch L_k2_store")
        blocks.append(s)
    for s in blocks: a.lines += s.lines
    a.reset_state()
    a.label("L_k2_store")
    a.valu("v_and_b32", "v1", "15", "v2"); a.valu("v_lshrrev_b32", "v24", "4", "v2")
    a.valu("v_lshlrev_b32", "v1", "11", "v1"); a.valu("v_lshl_add_u32", "v1", "v24", "3", "v1")
    a.salu(f"s_and_b32 {sTmp}, {sBB}, 15"); a.salu(f"s_mul_i32 {sTmp}, {sTmp}, {144*2048}")
    a.salu(f"s_lshl_b32 {sTmp2}, {sBlk}, 10"); a.salu(f"s_add_u32 {sTmp}, {sTmp}, {sTmp2}")
    a.salu(f"s_lshl_b32 {sTmp2}, {sNq}, 7"); a.salu(f"s_add_u32 {sTmp}, {sTmp}, {sTmp2}")
    a.salu(f"s_lshl_b32 {sTmp2}, {sW}, 5"); a.salu(f"s_add_u32 {sTmp}, {sTmp}, {sTmp2}")
    for qt in range(9):
        for j in range(2): a.valu("v_cvt_pk_bf16_f32", R(200 + 2 * qt + j), R(BUF + 4 * qt + 2 * j), R(BUF + 4 * qt + 2 * j + 1))
        a.buf_store("buffer_store_dwordx2", R(200 + 2 * qt, 2), "v1", sOut, sTmp, 0)
        a.salu(f"s_add_u32 {sTmp}, {sTmp}, {16*2048}")
    a.label("L_k2_end")
    a.raw("s_endpgm")

def kd(name, vgpr, accum, sgpr=102):
    return f""".amdhsa_kernel {name}
  .amdhsa_next_free_vgpr {vgpr}
  .amdhsa_next_free_sgpr {sgpr}
  .amdhsa_accum_offset {accum}
  .amdhsa_group_segment_fixed_size 0
  .amdhsa_kernarg_size 104
  .amdhsa_user_sgpr_count 2
  .amdhsa_user_sgpr_kernarg_segment_ptr 1
  .amdhsa_system_sgpr_workgroup_id_x 1
.end_amdhsa_kernel
"""

def build(opt):
    hdr = open(f"cdna_kernels/{NAME}.s.ref").read().split("\n")
    comments = [l for l in hdr if l.startswith(";") and "@launch" not in l and "Override launch" not in l and "grid=ceil" not in l]
    k1 = Asm(); gen_k1(k1, opt)
    k2 = Asm(); gen_k2(k2, opt)
    out = "\n".join(comments) + "\n"
    out += f"; @launch kernel={NAME}_kernel grid=(1024,1,1) block=(256,1,1) lds=81920\n"
    out += f"; @launch kernel=oproj_kernel grid=(256,1,1) block=(256,1,1) lds=147456\n"
    out += '.amdgcn_target "amdgcn-amd-amdhsa--gfx950"\n.text\n'
    for nm, k in ((NAME + "_kernel", k1), ("oproj_kernel", k2)):
        out += f".globl {nm}\n.p2align 8\n.type {nm},@function\n{nm}:\n" + k.text()
    out += '.section .rodata,"a"\n.p2align 6\n' + kd(NAME + "_kernel", 256, 256) + ".p2align 6\n" + kd("oproj_kernel", 400, 256)
    return out

if __name__ == "__main__":
    opt = dict(OPT)
    outp = f"cdna_kernels/{NAME}.s"
    for arg in sys.argv[1:]:
        k, v = arg.split("=", 1)
        if k == "out": outp = v
        elif k == "thr": opt[k] = float(v)
        else: opt[k] = v
    open(outp, "w").write(build(opt))
    print("wrote", outp)
```
